```python
import torch

def _softmax(x, axis=-1):
    return torch.softmax(x, dim=axis)
def _gelu(x):
    return torch.nn.functional.gelu(x, approximate="tanh")
def _silu(x):
    return torch.nn.functional.silu(x)
def _sigmoid(x):
    return torch.sigmoid(x)
def _layernorm(x, axis=-1, eps=1e-5):
    m = x.mean(dim=axis, keepdim=True)
    v = x.var(dim=axis, keepdim=True, unbiased=False)
    return (x - m) / torch.sqrt(v + eps)
def _scatter_add(tgt, idx, src, axis=0):
    return tgt.clone().index_add_(axis, idx, src)
def _segment_sum(src, seg, n):
    out = torch.zeros((n,) + src.shape[1:], dtype=src.dtype)
    return out.index_add_(0, seg, src)
def _pad(x, pw):
    flat = tuple(v for pair in reversed(pw) for v in pair)
    return torch.nn.functional.pad(x, flat)

kernel_name = 'concat_heads__mha_block_cached__mha_block_cached__decode'

def setup_inputs():

    _w = (lambda a: (lambda t: t.to(torch.bfloat16) if t.is_floating_point() else t)(torch.as_tensor(a)))
    def _A_setup():
        B, Sq, D = 4, 1, 512
        H, Sk, Dh = 32, 4096, 128
        return {
            "x": _w((lambda *s: torch.randn(*s, dtype=torch.bfloat16) * 0.8)(B, Sq, D)),
            "k_cache": _w((lambda *s: torch.randn(*s, dtype=torch.bfloat16) * 1.6)(B, H, Sk, Dh)),
            "v_cache": _w((lambda *s: torch.randn(*s, dtype=torch.bfloat16) * 0.2)(B, H, Sk, Dh)),
            "wq": _w((lambda *s: torch.randn(*s, dtype=torch.bfloat16) * 1.6)(D, H * Dh) * (D ** -0.5)),
            "wo": _w((lambda *s: torch.randn(*s, dtype=torch.bfloat16) * 0.2)(H * Dh, D) * ((H * Dh) ** -0.5)),
        }
    _A_in = _A_setup()

    def _B_setup():
        B, Sq, D = 4, 1, 512
        H, Sk, Dh = 32, 4096, 128
        return {
            "x": _w((lambda *s: torch.randn(*s, dtype=torch.bfloat16) * 0.8)(B, Sq, D)),
            "k_cache": _w((lambda *s: torch.randn(*s, dtype=torch.bfloat16) * 1.6)(B, H, Sk, Dh)),
            "v_cache": _w((lambda *s: torch.randn(*s, dtype=torch.bfloat16) * 0.2)(B, H, Sk, Dh)),
            "wq": _w((lambda *s: torch.randn(*s, dtype=torch.bfloat16) * 1.6)(D, H * Dh) * (D ** -0.5)),
            "wo": _w((lambda *s: torch.randn(*s, dtype=torch.bfloat16) * 0.2)(H * Dh, D) * ((H * Dh) ** -0.5)),
        }
    _B_in = _B_setup()

    return {
        "A_x": _A_in["x"],
        "A_k_cache": _A_in["k_cache"],
        "A_v_cache": _A_in["v_cache"],
        "A_wq": _A_in["wq"],
        "A_wo": _A_in["wo"],
        "B_x": _B_in["x"],
        "B_k_cache": _B_in["k_cache"],
        "B_v_cache": _B_in["v_cache"],
        "B_wq": _B_in["wq"],
        "B_wo": _B_in["wo"],
    }

def reference(A_x, A_k_cache, A_v_cache, A_wq, A_wo, B_x, B_k_cache, B_v_cache, B_wq, B_wo):
    def _A_ref(x, k_cache, v_cache, wq, wo):
        B, Sq, D = x.shape
        H, Dh = 32, 128
        q = (lambda x, *d: x.permute(*d))((x @ wq).reshape(B, Sq, H, Dh), 0, 2, 1, 3)
        scores = torch.einsum("bhqd,bhkd->bhqk", q, k_cache) * (Dh ** -0.5)
        p = _softmax(scores, axis=-1)
        o = torch.einsum("bhqk,bhkd->bhqd", p, v_cache)
        return (lambda x, *d: x.permute(*d))(o, 0, 2, 1, 3).reshape(B, Sq, H * Dh) @ wo

    def _B_ref(x, k_cache, v_cache, wq, wo):
        B, Sq, D = x.shape
        H, Dh = 32, 128
        q = (lambda x, *d: x.permute(*d))((x @ wq).reshape(B, Sq, H, Dh), 0, 2, 1, 3)
        scores = torch.einsum("bhqd,bhkd->bhqk", q, k_cache) * (Dh ** -0.5)
        p = _softmax(scores, axis=-1)
        o = torch.einsum("bhqk,bhkd->bhqd", p, v_cache)
        return (lambda x, *d: x.permute(*d))(o, 0, 2, 1, 3).reshape(B, Sq, H * Dh) @ wo

    a = _A_ref(A_x, A_k_cache, A_v_cache, A_wq, A_wo)
    b = _B_ref(B_x, B_k_cache, B_v_cache, B_wq, B_wo)
    return torch.concatenate([a, b], axis=-1)
```

```python
import argparse
import struct

NAME = "concat_heads__mha_block_cached__mha_block_cached__decode"

HEADER = """\
"""


def f2u(x):
    return struct.unpack("<I", struct.pack("<f", x))[0]


class Gen:
    def __init__(self, o):
        self.o = o
        self.L = []

    def e(self, s):
        self.L.append("    " + s)

    def lab(self, s):
        self.L.append(s + ":")

    def c(self, s):
        self.L.append("    ; " + s)

    def nop(self, n):
        while n > 0:
            k = min(n, 16)
            self.e(f"s_nop {k-1}")
            n -= k


def vr(b, n=4):
    return f"v[{b}:{b+n-1}]"


def sr(b, n=4):
    return f"s[{b}:{b+n-1}]"


def build(o):
    g = Gen(o)
    e, lab, c, nop = g.e, g.lab, g.c, g.nop
    KV = (" " + o.kvpol) if o.kvpol else ""
    WP = (" " + o.wpol) if o.wpol else ""

    sK, sV, sWQ, sWO, sX, sWS, sOUT, sDBG = 8, 12, 16, 20, 24, 28, 32, 36
    sPTR = 40
    sW = 66
    sBLK, sB, sH = 67, 68, 69
    sCurK, sCurV, sOff, sT = 70, 71, 72, 73
    sTmp, sTmp2 = 74, 75
    sM1, sM2, sM3 = 76, 78, 80
    sMx = 82
    sC = 83
    sGrp = 84
    sStamp = 86
    sSpin = 88
    sOutMask = 90
    vL = 1
    vKoff, vVoff, vWqoff, vWooff, vXoff = 2, 3, 4, 5, 6
    vStOff, vPollOff, vOutOff = 7, 8, 9
    vLdsW, vLdsR, vLdsQ = 10, 11, 12
    vT0, vT1, vT2, vT3 = 13, 14, 15, 16
    vX = 17
    vLsum = 18
    vRdy = 19
    vMask = 20
    vA = 24
    vO = 28
    vB = 32
    vD = 48
    vS = 64
    vU = 72
    vStampA = 88
    vStampD = 90
    vSlot = 96
    vW = 160

    LQ = 0
    LQB = 4096
    LMX = 6144
    LLS = 6208
    LO = 8192
    LDS_BYTES = 12288

    MASK1M = 0xFFFFF
    if o.layout == "il":
        strideW, inc = 4096, [32768] * 4
    elif o.layout == "ct":
        strideW, inc = 16384, [4096, 4096, 4096, 131072 - 12288]
    elif o.layout == "pv":
        strideW, inc = 131072, [4096] * 4
    else:
        raise ValueError

    def stamp(i):
        if not o.diag:
            return
        lbl = f"L_st{i}"
        e(f"s_cmp_lg_u32 s{sW}, 0")
        e(f"s_cbranch_scc1 {lbl}")
        e(f"s_memrealtime s[{sStamp}:{sStamp+1}]")
        e("s_waitcnt lgkmcnt(0)")
        e(f"v_mov_b32 v{vStampD}, s{sStamp}")
        e(f"v_mov_b32 v{vStampD+1}, s{sStamp+1}")
        e(f"buffer_store_dwordx2 v[{vStampD}:{vStampD+1}], v{vStampA}, {sr(sWS)}, 0 offen offset:{8*i}")
        lab(lbl)

    def adv(s, G):
        e(f"s_add_u32 s{s}, s{s}, {inc[G]}")
        if o.stagger:
            e(f"s_and_b32 s{s}, s{s}, {MASK1M}")

    def kload(j):
        e(f"buffer_load_dwordx4 {vr(vSlot+4*j)}, v{vKoff}, {sr(sK)}, s{sCurK} offen offset:{(j&3)*1024}{KV}")
        if (j & 3) == 3:
            adv(sCurK, j >> 2)

    def vload(j):
        e(f"buffer_load_dwordx4 {vr(vSlot+4*j)}, v{vVoff}, {sr(sV)}, s{sCurV} offen offset:{(j&3)*1024}{KV}")
        if (j & 3) == 3:
            adv(sCurV, j >> 2)

    def sel_a(src, lane):
        for r in range(4):
            e(f"v_and_b32_dpp v{vA+r}, v{src}, v{vMask+r} row_newbcast:{lane} row_mask:0xf bank_mask:0xf")

    e("s_cmp_ge_u32 s2, 256")
    e("s_cbranch_scc1 L_end")
    e(f"s_load_dwordx16 s[{sPTR}:{sPTR+15}], s[0:1], 0")
    e(f"s_load_dwordx8 s[{sPTR+16}:{sPTR+23}], s[0:1], 64")
    e(f"s_load_dwordx2 s[{sPTR+24}:{sPTR+25}], s[0:1], 96")
    e(f"v_lshrrev_b32 v{vT0}, 6, v0")
    e(f"v_and_b32 v{vL}, 63, v0")
    e(f"v_readfirstlane_b32 s{sW}, v{vT0}")
    e(f"s_lshr_b32 s{sBLK}, s2, 7")
    e(f"s_bfe_u32 s{sB}, s2, 0x20005")
    e(f"s_and_b32 s{sH}, s2, 31")
    e(f"s_lshr_b32 s{sGrp}, s2, 5")
    e(f"v_lshrrev_b32 v{vT0}, 4, v{vL}")
    e(f"v_and_b32 v{vT1}, 15, v{vL}")
    e(f"v_bfe_u32 v{vT2}, v{vL}, 2, 2")
    e(f"v_and_b32 v{vT3}, 3, v{vL}")
    c("K pattern: key kk, chunk 4s+cc")
    e(f"v_lshlrev_b32 v{vKoff}, 8, v{vT2}")
    e(f"v_lshl_add_u32 v{vKoff}, v{vT0}, 6, v{vKoff}")
    e(f"v_lshl_add_u32 v{vKoff}, v{vT3}, 4, v{vKoff}")
    e(f"v_lshlrev_b32 v{vVoff}, 4, v{vL}")
    e(f"v_lshlrev_b32 v{vU}, 4, v{vT1}")
    e(f"v_lshl_add_u32 v{vWqoff}, v{vT0}, 13, v{vU}")
    e(f"v_lshl_add_u32 v{vWooff}, v{vT0}, 10, v{vU}")
    e(f"v_lshl_add_u32 v{vXoff}, v{vT1}, 2, v{vT0}")
    e(f"v_lshlrev_b32 v{vLdsR}, 2, v{vXoff}")
    e(f"v_lshlrev_b32 v{vXoff}, 1, v{vXoff}")
    e(f"v_cmp_eq_u32 s[{sM1}:{sM1+1}], 1, v{vT3}")
    e(f"v_cmp_eq_u32 s[{sM2}:{sM2+1}], 2, v{vT3}")
    e(f"v_cmp_eq_u32 s[{sM3}:{sM3+1}], 3, v{vT3}")
    e(f"v_cmp_eq_u32 s[{sOutMask}:{sOutMask+1}], 0, v{vT2}")
    e("s_waitcnt lgkmcnt(0)")
    e(f"s_cmp_eq_u32 s{sBLK}, 0")
    for dst, ia in ((sX, 0), (sK, 1), (sV, 2), (sWQ, 3), (sWO, 4)):
        a = sPTR + 2 * ia
        b = sPTR + 2 * (ia + 5)
        e(f"s_cselect_b32 s{dst}, s{a}, s{b}")
        e(f"s_cselect_b32 s{dst+1}, s{a+1}, s{b+1}")
    e(f"s_and_b32 s{sTmp}, s2, 127")
    e(f"s_lshl_b32 s{sTmp}, s{sTmp}, 20")
    for d in (sK, sV):
        e(f"s_add_u32 s{d}, s{d}, s{sTmp}")
        e(f"s_addc_u32 s{d+1}, s{d+1}, 0")
        e(f"s_mov_b32 s{d+2}, 0x100000")
        e(f"s_mov_b32 s{d+3}, 0x20000")
    e(f"s_mov_b32 s{sWQ+2}, 0x400000")
    e(f"s_mov_b32 s{sWQ+3}, 0x20000")
    e(f"s_mov_b32 s{sX+2}, 4096")
    e(f"s_mov_b32 s{sX+3}, 0x20000")
    e(f"s_lshl_b32 s{sTmp}, s{sB}, 10")
    e(f"s_lshl_b32 s{sTmp2}, s{sW}, 7")
    e(f"s_add_u32 s{sTmp}, s{sTmp}, s{sTmp2}")
    e(f"buffer_load_ushort v{vX}, v{vXoff}, {sr(sX)}, s{sTmp} offen")
    e(f"s_lshl_b32 s{sOff}, s{sW}, 19")
    e(f"s_lshl_b32 s{sTmp2}, s{sH}, 8")
    e(f"s_add_u32 s{sOff}, s{sOff}, s{sTmp2}")
    e(f"s_mul_i32 s{sCurK}, s{sW}, {strideW}")
    if o.stagger:
        e(f"s_mul_i32 s{sTmp}, s2, {o.stagger}")
        e(f"s_add_u32 s{sCurK}, s{sCurK}, s{sTmp}")
        e(f"s_and_b32 s{sCurK}, s{sCurK}, {MASK1M}")
    e(f"s_mov_b32 s{sCurV}, s{sCurK}")

    def wqload(j):
        e(f"buffer_load_dwordx4 {vr(vW+4*j)}, v{vWqoff}, {sr(sWQ)}, s{sOff} offen{WP}")
        if j < 15:
            e(f"s_add_u32 s{sOff}, s{sOff}, 32768")

    order = []
    if o.prolog == "wk":
        order = [("w", j) for j in range(16)] + [("k", j) for j in range(16)]
    elif o.prolog == "mix21":
        for i in range(8):
            order += [("w", 2 * i), ("w", 2 * i + 1), ("k", i)]
        order += [("k", j) for j in range(8, 16)]
    elif o.prolog == "mix11":
        for i in range(16):
            order += [("w", i), ("k", i)]
    elif o.prolog == "mix41":
        for i in range(4):
            order += [("w", 4 * i + t) for t in range(4)] + [("k", i)]
        order += [("k", j) for j in range(4, 16)]
    for kind, j in order:
        (wqload if kind == "w" else kload)(j)
    younger = {j: len(order) - 1 - order.index(("w", j)) for j in range(16)}

    e(f"s_lshl_b32 s{sTmp}, s{sH}, 17")
    e(f"s_add_u32 s{sWO}, s{sWO}, s{sTmp}")
    e(f"s_addc_u32 s{sWO+1}, s{sWO+1}, 0")
    e(f"s_mov_b32 s{sWO+2}, 0x20000")
    e(f"s_mov_b32 s{sWO+3}, 0x20000")
    e(f"s_mov_b32 s{sOUT}, s{sPTR+20}")
    e(f"s_mov_b32 s{sOUT+1}, s{sPTR+21}")
    e(f"s_mov_b32 s{sOUT+2}, 8192")
    e(f"s_mov_b32 s{sOUT+3}, 0x20000")
    e(f"s_mov_b32 s{sDBG}, s{sPTR+22}")
    e(f"s_mov_b32 s{sDBG+1}, s{sPTR+23}")
    e(f"s_mov_b32 s{sDBG+2}, 256")
    e(f"s_mov_b32 s{sDBG+3}, 0x20000")
    e(f"s_mov_b32 s{sWS}, s{sPTR+24}")
    e(f"s_mov_b32 s{sWS+1}, s{sPTR+25}")
    e(f"s_mov_b32 s{sWS+2}, 0x400000")
    e(f"s_mov_b32 s{sWS+3}, 0x20000")
    e(f"s_mov_b32 s{sC}, {f2u(128 ** -0.5 * 1.4426950408889634):#x}")
    if o.diag:
        e(f"s_lshl_b32 s{sTmp}, s2, 6")
        e(f"s_add_u32 s{sTmp}, s{sTmp}, 0x200000")
        e(f"v_mov_b32 v{vStampA}, s{sTmp}")
    stamp(0)
    c("selection masks for the p-scaled A operand")
    e(f"v_and_b32 v{vU}, 1, v{vT1}")
    e(f"v_mov_b32 v{vU+1}, 0xffff")
    e(f"v_lshlrev_b32 v{vU}, 4, v{vU}")
    e(f"v_lshlrev_b32 v{vU+1}, v{vU}, v{vU+1}")
    e(f"v_lshrrev_b32 v{vU+2}, 1, v{vT1}")
    for r in range(4):
        e(f"v_cmp_eq_u32 vcc, {r}, v{vU+2}")
        nop(2)
        e(f"v_cndmask_b32 v{vMask+r}, 0, v{vU+1}, vcc")
    c("LDS addresses")
    e(f"s_lshl_b32 s{sTmp}, s{sW}, 9")
    e(f"v_lshlrev_b32 v{vLdsW}, 5, v{vT1}")
    e(f"v_lshl_add_u32 v{vLdsW}, v{vT0}, 4, v{vLdsW}")
    e(f"v_add_u32 v{vLdsW}, s{sTmp}, v{vLdsW}")
    e(f"s_lshr_b32 s{sTmp}, s{sW}, 2")
    e(f"s_lshl_b32 s{sTmp}, s{sTmp}, 8")
    e(f"v_add_u32 v{vLdsR}, s{sTmp}, v{vLdsR}")
    e(f"s_lshl_b32 s{sTmp}, s{sW}, 8")
    e(f"v_lshl_add_u32 v{vLdsQ}, v{vT0}, 2, v{vT3}")
    e(f"v_lshlrev_b32 v{vLdsQ}, 4, v{vLdsQ}")
    e(f"v_add_u32 v{vLdsQ}, s{sTmp}, v{vLdsQ}")
    c("inbox addresses: ws[grp][consumer][producer h][hf][16 cols] f32")
    e(f"s_lshl_b32 s{sTmp}, s{sGrp}, 17")
    e(f"s_and_b32 s{sTmp2}, s{sW}, 3")
    e(f"s_lshl_b32 s{sTmp2}, s{sTmp2}, 15")
    e(f"s_add_u32 s{sTmp}, s{sTmp}, s{sTmp2}")
    e(f"s_lshl_b32 s{sTmp2}, s{sH}, 7")
    e(f"s_add_u32 s{sTmp}, s{sTmp}, s{sTmp2}")
    e(f"s_lshr_b32 s{sTmp2}, s{sW}, 2")
    e(f"s_lshl_b32 s{sTmp2}, s{sTmp2}, 6")
    e(f"s_add_u32 s{sTmp}, s{sTmp}, s{sTmp2}")
    e(f"v_lshlrev_b32 v{vStOff}, 12, v{vU+2}")
    e(f"v_lshl_add_u32 v{vStOff}, v{vU}, 1, v{vStOff}")
    e(f"v_lshl_add_u32 v{vStOff}, v{vT0}, 4, v{vStOff}")
    e(f"v_add_u32 v{vStOff}, s{sTmp}, v{vStOff}")
    e(f"s_lshl_b32 s{sTmp}, s2, 12")
    e(f"v_add_u32 v{vPollOff}, s{sTmp}, v{vVoff}")
    e(f"s_lshl_b32 s{sTmp}, s{sB}, 10")
    e(f"s_lshl_b32 s{sTmp2}, s{sBLK}, 9")
    e(f"s_add_u32 s{sTmp}, s{sTmp}, s{sTmp2}")
    e(f"s_lshl_b32 s{sTmp2}, s{sH}, 4")
    e(f"s_add_u32 s{sTmp}, s{sTmp}, s{sTmp2}")
    e(f"v_lshl_add_u32 v{vOutOff}, v{vT3}, 2, v{vT0}")
    e(f"v_add_u32 v{vOutOff}, s{sTmp}, v{vOutOff}")
    e(f"v_lshlrev_b32 v{vOutOff}, 1, v{vOutOff}")

    c("q partial over this wave's 64 rows of wq")
    e(f"s_waitcnt vmcnt({len(order)})")
    e(f"v_lshl_or_b32 v{vX}, v{vX}, 16, v{vX}")
    nop(2)
    for j in range(16):
        sel_a(vX, j)
        e(f"s_waitcnt vmcnt({younger[j]})")
        nop(1)
        e(f"v_mfma_f32_16x16x32_bf16 {vr(vO)}, {vr(vA)}, {vr(vW+4*j)}, {'0' if j == 0 else vr(vO)}")
    nop(8)
    e("s_mov_b32 exec_hi, 0")
    e(f"ds_write_b128 v{vLdsW}, {vr(vO)} offset:{LQ}")
    e("s_mov_b32 exec_hi, -1")
    e(f"v_lshlrev_b32 v{vT0}, 3, v{vL}")
    e("s_waitcnt lgkmcnt(0)")
    e("s_barrier")
    for w in range(8):
        e(f"ds_read_b64 v[{vU+2*w}:{vU+2*w+1}], v{vT0} offset:{LQ+512*w}")
    e(f"s_lshl_b32 s{sTmp}, s{sW}, 8")
    e(f"v_lshl_add_u32 v{vT1}, v{vL}, 2, s{sTmp}")
    e("s_waitcnt lgkmcnt(0)")
    for st in (4, 2, 1):
        for w in range(st):
            for k in range(2):
                e(f"v_add_f32 v{vU+2*w+k}, v{vU+2*w+k}, v{vU+2*(w+st)+k}")
    e(f"v_cvt_pk_bf16_f32 v{vU}, v{vU}, v{vU+1}")
    e(f"ds_write_b32 v{vT1}, v{vU} offset:{LQB}")
    e(f"ds_read_b128 {vr(vU+4)}, v{vLdsQ} offset:{LQB}")
    e(f"v_bfe_u32 v{vT2}, v{vL}, 2, 2")
    e("s_waitcnt lgkmcnt(0)")
    for gg in range(4):
        e(f"v_cmp_eq_u32 vcc, {gg}, v{vT2}")
        nop(2)
        for r in range(4):
            e(f"v_cndmask_b32 v{vB+4*gg+r}, 0, v{vU+4+r}, vcc")
    c("wave 0 clears this workgroup's inbox")
    e(f"s_cmp_lg_u32 s{sW}, 0")
    e("s_cbranch_scc1 L_noclear")
    for r in range(4):
        e(f"v_mov_b32 v{vU+8+r}, -1")
    for u in range(4):
        e(f"buffer_store_dwordx4 {vr(vU+8)}, v{vPollOff}, {sr(sWS)}, 0 offen offset:{1024*u} sc1")
    lab("L_noclear")
    stamp(1)

    def kbody(nxt, cnt):
        for j in range(16):
            e(f"s_waitcnt vmcnt({cnt})")
            G, gg = j >> 2, j & 3
            e(f"v_mfma_f32_16x16x32_bf16 {vr(vD+4*G)}, {vr(vSlot+4*j)}, {vr(vB+4*gg)}, {'0' if gg == 0 else vr(vD+4*G)}")
            nxt(j)
        for i in range(7):
            e(f"v_mov_b32 v{vS+i}, v{vS+i+1}")
        nop(1)
        for step in range(3):
            for G in range(4):
                others = [r for r in range(4) if r != G]
                a = others[step]
                src1 = vD + 4 * G + G if step == 0 else vU + G
                dst = vU + G if not (step == 2 and G == 0) else vS + 7
                e(f"v_add_f32_dpp v{dst}, v{vD+4*G+a}, v{src1} quad_perm:[{a},{a},{a},{a}] row_mask:0xf bank_mask:0xf")
        for G, m in ((1, sM1), (2, sM2), (3, sM3)):
            e(f"v_cndmask_b32 v{vS+7}, v{vS+7}, v{vU+G}, s[{m}:{m+1}]")

    e(f"s_mov_b32 s{sT}, 0")
    lab("L_kloop")
    kbody(kload, 15)
    e(f"s_add_u32 s{sT}, s{sT}, 1")
    e(f"s_cmp_lt_u32 s{sT}, 7")
    e("s_cbranch_scc1 L_kloop")
    c("output-projection slice goes into the wq registers")
    e(f"s_lshr_b32 s{sOff}, s{sW}, 2")
    e(f"s_lshl_b32 s{sOff}, s{sOff}, 16")
    e(f"s_and_b32 s{sTmp}, s{sW}, 3")
    e(f"s_lshl_b32 s{sTmp}, s{sTmp}, 8")
    e(f"s_add_u32 s{sOff}, s{sOff}, s{sTmp}")
    for j in range(16):
        e(f"buffer_load_dwordx4 {vr(vW+4*j)}, v{vWooff}, {sr(sWO)}, s{sOff} offen{WP}")
        if j < 15:
            e(f"s_add_u32 s{sOff}, s{sOff}, 4096")
    kbody(vload, 31)
    stamp(2)

    c("row maximum: wave, then workgroup")
    e(f"v_max3_f32 v{vU}, v{vS}, v{vS+1}, v{vS+2}")
    e(f"v_max3_f32 v{vU+1}, v{vS+3}, v{vS+4}, v{vS+5}")
    e(f"v_max3_f32 v{vU}, v{vU}, v{vS+6}, v{vS+7}")
    e(f"v_max_f32 v{vU}, v{vU}, v{vU+1}")

    def wave_reduce(op, r):
        for ctl in ("row_ror:8", "row_ror:4", "row_ror:2", "row_ror:1"):
            nop(2)
            e(f"{op}_dpp v{r}, v{r}, v{r} {ctl} row_mask:0xf bank_mask:0xf")
        nop(2)
        e(f"{op}_dpp v{r}, v{r}, v{r} row_bcast:15 row_mask:0xa bank_mask:0xf")
        nop(2)
        e(f"{op}_dpp v{r}, v{r}, v{r} row_bcast:31 row_mask:0xc bank_mask:0xf")

    wave_reduce("v_max_f32", vU)
    e(f"s_lshl_b32 s{sTmp}, s{sW}, 2")
    e(f"v_mov_b32 v{vT0}, s{sTmp}")
    e("s_mov_b32 exec_lo, 0")
    e("s_mov_b32 exec_hi, 0x80000000")
    e(f"ds_write_b32 v{vT0}, v{vU} offset:{LMX}")
    e("s_mov_b64 exec, -1")
    e(f"v_mov_b32 v{vT1}, 0")
    e("s_waitcnt lgkmcnt(0)")
    e("s_barrier")
    e(f"ds_read_b128 {vr(vU)}, v{vT1} offset:{LMX}")
    e(f"ds_read_b128 {vr(vU+4)}, v{vT1} offset:{LMX+16}")
    c("wave 0: inbox is cleared (stores retired long ago, vmcnt is in order) -> tell the group")
    e(f"s_cmp_lg_u32 s{sW}, 0")
    e("s_cbranch_scc1 L_nosig")
    e(f"s_lshl_b32 s{sTmp}, s{sGrp}, 5")
    e(f"v_mov_b32 v{vT2}, 1")
    e("s_mov_b64 exec, 1")
    e(f"buffer_atomic_add v{vT2}, v{vT1}, {sr(sDBG)}, s{sTmp} offen sc1")
    e("s_mov_b64 exec, -1")
    lab("L_nosig")
    e("s_waitcnt lgkmcnt(0)")
    e(f"v_max3_f32 v{vU}, v{vU}, v{vU+1}, v{vU+2}")
    e(f"v_max3_f32 v{vU+3}, v{vU+3}, v{vU+4}, v{vU+5}")
    e(f"v_max3_f32 v{vU}, v{vU}, v{vU+6}, v{vU+7}")
    e(f"v_max_f32 v{vU}, v{vU}, v{vU+3}")
    e(f"v_mul_f32 v{vU}, s{sC}, v{vU}")
    for i in range(8):
        e(f"v_fma_f32 v{vS+i}, v{vS+i}, s{sC}, -v{vU}")
    for i in range(8):
        e(f"v_exp_f32 v{vS+i}, v{vS+i}")
    nop(1)
    for i in range(8):
        e(f"v_cvt_pk_bf16_f32 v{vS+i}, v{vS+i}, v{vS+i}")
    for i in range(8):
        e(f"v_lshlrev_b32 v{vU+i}, 16, v{vS+i}")
    for st in (4, 2, 1):
        for i in range(st):
            e(f"v_add_f32 v{vU+i}, v{vU+i}, v{vU+i+st}")
    wave_reduce("v_add_f32", vU)
    e("s_mov_b32 exec_lo, 0")
    e("s_mov_b32 exec_hi, 0x80000000")
    e(f"ds_write_b32 v{vT0}, v{vU} offset:{LLS}")
    e("s_mov_b64 exec, -1")
    for r in range(4):
        e(f"v_mov_b32 v{vO+r}, 0")

    def vbody(last):
        for j in range(16):
            G, gg = j >> 2, j & 3
            sel_a(vS, 4 * gg + G)
            e(f"s_waitcnt vmcnt({15 - j + 1 if last else 15})")
            nop(1)
            e(f"v_mfma_f32_16x16x32_bf16 {vr(vO)}, {vr(vA)}, {vr(vSlot+4*j)}, {vr(vO)}")
            if not last:
                vload(j)
        if not last:
            for i in range(7):
                e(f"v_mov_b32 v{vS+i}, v{vS+i+1}")

    e(f"s_mov_b32 s{sT}, 0")
    lab("L_vloop")
    vbody(False)
    e(f"s_add_u32 s{sT}, s{sT}, 1")
    e(f"s_cmp_lt_u32 s{sT}, 7")
    e("s_cbranch_scc1 L_vloop")
    c("every wave reads the group's ready counter (one more op in the vmcnt order)")
    e(f"s_lshl_b32 s{sTmp}, s{sGrp}, 5")
    e(f"buffer_load_dword v{vRdy}, v{vT1}, {sr(sDBG)}, s{sTmp} offen sc1")
    vbody(True)
    stamp(3)

    nop(8)
    e("s_mov_b32 exec_hi, 0")
    e(f"ds_write_b128 v{vLdsW}, {vr(vO)} offset:{LO}")
    e("s_mov_b32 exec_hi, -1")
    e("s_waitcnt lgkmcnt(0)")
    e("s_barrier")
    for w in range(8):
        e(f"ds_read_b32 v{vU+w}, v{vLdsR} offset:{LO+512*w}")
    e(f"ds_read_b128 {vr(vU+8)}, v{vT1} offset:{LLS}")
    e(f"ds_read_b128 {vr(vU+12)}, v{vT1} offset:{LLS+16}")
    e("s_waitcnt lgkmcnt(0)")
    for st in (4, 2, 1):
        for i in range(st):
            e(f"v_add_f32 v{vU+8+i}, v{vU+8+i}, v{vU+8+i+st}")
            e(f"v_add_f32 v{vU+i}, v{vU+i}, v{vU+i+st}")
    e(f"v_rcp_f32 v{vU+8}, v{vU+8}")
    nop(1)
    e(f"v_mul_f32 v{vU}, v{vU}, v{vU+8}")
    e(f"v_cvt_pk_bf16_f32 v{vX}, v{vU}, v{vU}")
    nop(2)
    for j in range(16):
        sel_a(vX, j)
        nop(2)
        e(f"v_mfma_f32_16x16x32_bf16 {vr(vO)}, {vr(vA)}, {vr(vW+4*j)}, {'0' if j == 0 else vr(vO)}")
    c("all inboxes of the group must be cleared before anything is put into them")
    e(f"s_mov_b32 s{sSpin}, 0")
    lab("L_rdy")
    e("s_waitcnt vmcnt(0)")
    e(f"v_readfirstlane_b32 s{sTmp2}, v{vRdy}")
    e(f"s_add_u32 s{sSpin}, s{sSpin}, 1")
    e(f"s_cmp_ge_u32 s{sSpin}, {o.spin}")
    e("s_cbranch_scc1 L_rdy_ok")
    e(f"s_cmp_ge_u32 s{sTmp2}, 32")
    e("s_cbranch_scc1 L_rdy_ok")
    e(f"buffer_load_dword v{vRdy}, v{vT1}, {sr(sDBG)}, s{sTmp} offen sc1")
    e("s_branch L_rdy")
    lab("L_rdy_ok")
    nop(3)
    for r in range(4):
        e(f"v_min_u32 v{vO+r}, -2, v{vO+r}")
    e("s_mov_b32 exec_hi, 0")
    e(f"buffer_store_dwordx4 {vr(vO)}, v{vStOff}, {sr(sWS)}, 0 offen sc1")
    e("s_mov_b32 exec_hi, -1")
    e(f"s_cmp_lg_u32 s{sW}, 0")
    e("s_cbranch_scc1 L_end")
    stamp(4)
    c("wave 0: wait for the 64 partial rows of this workgroup's 16 output columns")
    e(f"s_mov_b32 s{sSpin}, 0")
    lab("L_poll")
    for u in range(4):
        e(f"buffer_load_dwordx4 {vr(vU+4*u)}, v{vPollOff}, {sr(sWS)}, 0 offen offset:{1024*u} sc1")
    e(f"s_add_u32 s{sSpin}, s{sSpin}, 1")
    e("s_waitcnt vmcnt(0)")
    e(f"v_max3_u32 v{vA}, v{vU}, v{vU+1}, v{vU+2}")
    e(f"v_max3_u32 v{vA+1}, v{vU+3}, v{vU+4}, v{vU+5}")
    e(f"v_max3_u32 v{vA+2}, v{vU+6}, v{vU+7}, v{vU+8}")
    e(f"v_max3_u32 v{vA+3}, v{vU+9}, v{vU+10}, v{vU+11}")
    e(f"v_max3_u32 v{vA}, v{vA}, v{vU+12}, v{vU+13}")
    e(f"v_max3_u32 v{vA+1}, v{vA+1}, v{vU+14}, v{vU+15}")
    e(f"v_max3_u32 v{vA}, v{vA}, v{vA+1}, v{vA+2}")
    e(f"v_max_u32 v{vA}, v{vA}, v{vA+3}")
    e(f"s_cmp_ge_u32 s{sSpin}, {o.spin}")
    e("s_cbranch_scc1 L_poll_ok")
    e(f"v_cmp_eq_u32 vcc, -1, v{vA}")
    e("s_cbranch_vccnz L_poll")
    lab("L_poll_ok")
    for r in range(4):
        e(f"v_add_f32 v{vU+r}, v{vU+r}, v{vU+4+r}")
        e(f"v_add_f32 v{vU+8+r}, v{vU+8+r}, v{vU+12+r}")
    for r in range(4):
        e(f"v_add_f32 v{vU+r}, v{vU+r}, v{vU+8+r}")
    nop(2)
    e(f"v_permlane32_swap_b32 v{vU}, v{vU+2}")
    e(f"v_permlane32_swap_b32 v{vU+1}, v{vU+3}")
    nop(2)
    e(f"v_add_f32 v{vU}, v{vU}, v{vU+2}")
    e(f"v_add_f32 v{vU+1}, v{vU+1}, v{vU+3}")
    nop(2)
    e(f"v_permlane16_swap_b32 v{vU}, v{vU+1}")
    nop(2)
    e(f"v_add_f32 v{vU}, v{vU}, v{vU+1}")
    nop(2)
    e(f"v_add_f32_dpp v{vU}, v{vU}, v{vU} row_ror:8 row_mask:0xf bank_mask:0xf")
    nop(2)
    e(f"v_add_f32_dpp v{vU}, v{vU}, v{vU} row_ror:4 row_mask:0xf bank_mask:0xf")
    e(f"v_cvt_pk_bf16_f32 v{vU}, v{vU}, v{vU}")
    e(f"s_mov_b64 exec, s[{sOutMask}:{sOutMask+1}]")
    e(f"buffer_store_short v{vU}, v{vOutOff}, {sr(sOUT)}, 0 offen")
    if o.diag:
        e("s_mov_b64 exec, -1")
        stamp(5)
    lab("L_end")
    e("s_endpgm")

    out = [HEADER.rstrip("\n"),
           f"; @launch grid=(256,1,1) block=(512,1,1) lds={LDS_BYTES}",
           '.amdgcn_target "amdgcn-amd-amdhsa--gfx950"',
           ".text",
           f".globl {NAME}_kernel",
           ".p2align 8",
           f".type {NAME}_kernel,@function",
           f"{NAME}_kernel:"]
    out += g.L
    out += ['.section .rodata,"a"',
            ".p2align 6",
            f".amdhsa_kernel {NAME}_kernel",
            "  .amdhsa_next_free_vgpr 256",
            "  .amdhsa_next_free_sgpr 102",
            "  .amdhsa_accum_offset 256",
            "  .amdhsa_group_segment_fixed_size 0",
            "  .amdhsa_kernarg_size 104",
            "  .amdhsa_user_sgpr_count 2",
            "  .amdhsa_user_sgpr_kernarg_segment_ptr 1",
            "  .amdhsa_system_sgpr_workgroup_id_x 1",
            "  .amdhsa_float_denorm_mode_32 3",
            ".end_amdhsa_kernel", ""]
    return "\n".join(out)


def parser():
    p = argparse.ArgumentParser()
    p.add_argument("-o", "--out", default=f"cdna_kernels/{NAME}.s")
    p.add_argument("--kvpol", default="nt")
    p.add_argument("--wpol", default="")
    p.add_argument("--layout", default="il")
    p.add_argument("--prolog", default="wk")
    p.add_argument("--stagger", type=int, default=0)
    p.add_argument("--spin", type=int, default=200000)
    p.add_argument("--diag", type=int, default=0)
    return p


if __name__ == "__main__":
    o = parser().parse_args()
    open(o.out, "w").write(build(o))
    print("wrote", o.out)
```
